```python
import torch

def _softmax(x, axis=-1):
    return torch.softmax(x, dim=axis)
def _gelu(x):
    return torch.nn.functional.gelu(x, approximate="tanh")
def _silu(x):
    return torch.nn.functional.silu(x)
def _sigmoid(x):
    return torch.sigmoid(x)
def _layernorm(x, axis=-1, eps=1e-5):
    m = x.mean(dim=axis, keepdim=True)
    v = x.var(dim=axis, keepdim=True, unbiased=False)
    return (x - m) / torch.sqrt(v + eps)
def _scatter_add(tgt, idx, src, axis=0):
    return tgt.clone().index_add_(axis, idx, src)
def _segment_sum(src, seg, n):
    out = torch.zeros((n,) + src.shape[1:], dtype=src.dtype)
    return out.index_add_(0, seg, src)
def _pad(x, pw):
    flat = tuple(v for pair in reversed(pw) for v in pair)
    return torch.nn.functional.pad(x, flat)

kernel_name = 'standalone__edge_featured_mpnn_egc__graph'

def setup_inputs():

    _w = (lambda a: (lambda t: t.to(torch.bfloat16) if t.is_floating_point() else t)(torch.as_tensor(a)))
    N, deg, D, De = 25000, 32, 64, max(4, 1)
    E = N * deg
    return {
        "x": _w((lambda *s: torch.randn(*s, dtype=torch.bfloat16) * 0.2)(N, D)),
        "e_attr": _w((lambda *s: torch.randn(*s, dtype=torch.bfloat16) * 0.2)(E, De)),
        "src": _w((lambda lo, hi, *s: torch.randint(lo, hi, s))(0, N, E).to(torch.int64)),
        "dst": _w((lambda lo, hi, *s: torch.randint(lo, hi, s))(0, N, E).to(torch.int64)),
        "u_w": _w((lambda *s: torch.randn(*s, dtype=torch.bfloat16) * 0.05)(D, D)),
        "v_w": _w((lambda *s: torch.randn(*s, dtype=torch.bfloat16) * 0.05)(D, D)),
        "g_w": _w((lambda *s: torch.randn(*s, dtype=torch.bfloat16) * 0.2)(2 * D + De, D)),
    }

def reference(x, e_attr, src, dst, u_w, v_w, g_w):
    N, D = x.shape
    g_in = torch.concatenate([x[dst], x[src], e_attr], axis=-1)
    eta = _sigmoid(g_in @ g_w)
    hv = x @ v_w
    msg = eta * hv[src]
    agg = _segment_sum(msg, dst, N)
    return _silu(x @ u_w + agg)
```

```python
import re, copy

REG = re.compile(r'^(?:-|\|)?(?:abs\()?([vsa])(?:(\d+)|\[(\d+):(\d+)\])\)?\|?$')
TRANS = ('v_exp_f32', 'v_rcp_f32', 'v_log_f32', 'v_rsq_f32', 'v_sqrt_f32', 'v_sin_f32', 'v_cos_f32', 'v_rcp_iflag_f32')

def regs_of(tok):
    tok = tok.strip()
    if tok in ('vcc',): return {('s', 'vcc_lo'), ('s', 'vcc_hi')}
    if tok in ('vcc_lo', 'vcc_hi'): return {('s', tok)}
    if tok == 'exec': return {('s', 'exec')}
    if tok in ('exec_lo', 'exec_hi'): return {('s', 'exec')}
    if tok == 'm0': return {('s', 'm0')}
    m = REG.match(tok)
    if not m: return set()
    f = m.group(1)
    if m.group(2) is not None: return {(f, int(m.group(2)))}
    return {(f, i) for i in range(int(m.group(3)), int(m.group(4)) + 1)}

def split_ops(s):
    out, depth, cur = [], 0, ''
    for ch in s:
        if ch in '[(': depth += 1
        if ch in '])': depth -= 1
        if ch == ',' and depth == 0:
            out.append(cur.strip()); cur = ''
        else: cur += ch
    if cur.strip(): out.append(cur.strip())
    return out

class Inst:
    def __init__(self, text):
        self.text = text.strip()
        t = self.text.split(';')[0].strip()
        parts = t.split(None, 1)
        self.op = parts[0]
        rest = parts[1] if len(parts) > 1 else ''
        ops = split_ops(rest)
        self.mods = []
        clean = []
        for o in ops:
            w = o.split()
            clean.append(w[0]); self.mods += w[1:]
        self.ops = clean
        self.dst = set(); self.src = set()
        self.kind = 'other'
        self.states = 1
        self.srcC = set(); self.srcAB = set()
        self.dpp = False
        self.optional = False
        op = self.op
        R = [regs_of(o) for o in clean]
        def un(l):
            s = set()
            for x in l: s |= x
            return s
        if op.startswith('v_mfma'):
            self.kind = 'mfma'; self.dst = R[0]; self.srcAB = R[1] | R[2]; self.srcC = R[3]; self.src = self.srcAB | self.srcC
            self.passes = 8 if '32x32' in op else 4
        elif op.startswith('v_'):
            self.kind = 'valu'
            base = re.sub(r'_(e32|e64|dpp|sdwa)$', '', op)
            if base in TRANS: self.kind = 'trans'
            if base.startswith('v_cmp'):
                self.dst = R[0]; self.src = un(R[1:])
                assert not base.startswith('v_cmpx')
            elif base in ('v_add_co_u32', 'v_sub_co_u32', 'v_addc_co_u32'):
                self.dst = R[0] | R[1]; self.src = un(R[2:])
            else:
                self.dst = R[0]; self.src = un(R[1:])
                if base.startswith('v_fmac') or base.startswith('v_pk_fmac') or base.startswith('v_dot2c') or base == 'v_writelane_b32':
                    self.src |= R[0]
                if base == 'v_cndmask_b32' and len(clean) == 3: self.src |= regs_of('vcc')
                if base.startswith('v_permlane'):
                    self.dst = R[0] | R[1]; self.src = R[0] | R[1]
            if op.endswith('_dpp') or any(m.startswith('row_') or m.startswith('quad_perm') for m in self.mods):
                self.dpp = True; self.src |= R[0]
            self.base = base
            self.src |= {('s', 'exec')}
        elif op.startswith('ds_'):
            self.kind = 'ds'
            if op.startswith('ds_read') or '_rtn' in op or op.startswith('ds_bpermute') or op.startswith('ds_permute') or op.startswith('ds_swizzle'):
                self.dst = R[0]; self.src = un(R[1:])
            else:
                self.src = un(R)
        elif op.startswith('buffer_') or op.startswith('global_'):
            self.kind = 'vmem'
            self.lds = 'lds' in self.mods or '_lds_' in op
            if 'load' in op and not self.lds:
                self.dst = R[0]; self.src = un(R[1:])
            else:
                self.src = un(R)
                if self.lds: self.src |= {('s', 'm0')}
            self.widestore = ('store' in op) and (op.endswith('x3') or op.endswith('x4'))
            if self.widestore:
                self.sdata = R[0] if op.startswith('buffer_') else R[1]
        elif op.startswith('s_load') or op.startswith('s_buffer_load') or op in ('s_memtime', 's_memrealtime'):
            self.kind = 'smem'; self.dst = R[0]; self.src = un(R[1:])
        elif op == 's_waitcnt': self.kind = 'wait'
        elif op == 's_nop':
            self.kind = 'nop'; self.states = int(clean[0], 0) + 1
        elif op in ('s_barrier', 's_endpgm', 's_setprio', 's_sleep') or op.startswith('s_cbranch') or op == 's_branch':
            self.kind = 'ctl'
        elif op.startswith('s_cmp') or op.startswith('s_bitcmp'):
            self.kind = 'salu'; self.src = un(R)
        elif op.startswith('s_'):
            self.kind = 'salu'; self.dst = R[0]; self.src = un(R[1:])
            if 'saveexec' in op: self.dst |= {('s', 'exec')}; self.src |= {('s', 'exec')}
            if op.startswith('s_addk') or op.startswith('s_mulk'): self.src |= R[0]
        else:
            raise ValueError('unknown op ' + text)
    def isvalu(self): return self.kind in ('valu', 'trans')

def vonly(s): return {r for r in s if r[0] in 'va'}
def sonly(s): return {r for r in s if r[0] == 's'}

class State:
    def __init__(self):
        self.lg = []
        self.vm = []
        self.hist = []
    def clone(self):
        s = State(); s.lg = list(self.lg); s.vm = list(self.vm); s.hist = list(self.hist); return s

def need_wait(q, touched, smem_idx=None):
    best = None
    for k, e in enumerate(q):
        if e[0] & touched:
            n = sum(1 for y in q[k + 1:] if not y[-1])
            best = n if best is None else min(best, n)
    return best

def hazard_states(hist, ins):
    need = 0
    dist = 0
    for p in reversed(hist):
        if dist >= 24: break
        req = 0
        pv = vonly(p.dst)
        if p.kind == 'mfma':
            big = {8: 12, 4: 8}[p.passes]
            if ins.kind == 'mfma':
                if pv & ins.srcAB: req = max(req, big)
                if pv & ins.srcC:
                    if not (ins.srcC == p.dst and ins.passes == p.passes): req = max(req, big - 2)
                elif pv & ins.dst: req = max(req, big - 2)
            elif ins.isvalu() or ins.kind in ('ds', 'vmem'):
                if pv & (vonly(ins.src) | vonly(ins.dst)): req = max(req, big)
            if ins.isvalu() and (vonly(p.srcC) & vonly(ins.dst)): req = max(req, {8: 7, 4: 3}[p.passes])
        if p.isvalu():
            if ins.kind == 'mfma' and (pv & ins.src): req = max(req, 2)
            if ins.isvalu():
                if ins.dpp and (pv & vonly(ins.src)): req = max(req, 2)
                if ins.base in ('v_readlane_b32', 'v_readfirstlane_b32') and (pv & vonly(ins.src)): req = max(req, 1)
                if ins.base.startswith('v_permlane') and (pv & vonly(ins.src)): req = max(req, 2)
                if p.kind == 'trans' and ins.kind != 'trans' and (pv & vonly(ins.src)): req = max(req, 1)
                if p.kind == 'trans' and ins.kind == 'trans' and (pv & vonly(ins.src)): req = max(req, 1)
                ps = sonly(p.dst)
                if ps & sonly(ins.src):
                    req = max(req, 4 if ins.base in ('v_readlane_b32', 'v_writelane_b32') else 2)
            if p.kind == 'trans' and ins.kind in ('ds', 'vmem', 'mfma') and (pv & vonly(ins.src)): req = max(req, 2)
            if ins.kind == 'vmem' and (sonly(p.dst) & sonly(ins.src)): req = max(req, 5)
            if ins.kind == 'salu' and (sonly(p.dst) & sonly(ins.src)): req = max(req, 1)
        if p.kind == 'salu' and ('s', 'm0') in p.dst and ins.kind == 'vmem' and getattr(ins, 'lds', False): req = max(req, 1)
        if p.kind == 'salu' and ('s', 'exec') in p.dst and ins.isvalu() and ins.dpp: req = max(req, 1)
        if p.kind == 'vmem' and getattr(p, 'widestore', False) and (p.sdata & vonly(ins.dst)): req = max(req, 2)
        if req > dist: need = max(need, req - dist)
        if not p.optional: dist += p.states
    return need

class Prog:
    def __init__(self):
        self.out = []
        self.st = State()
        self.opt = 0
        self.record = None
    def raw(self, s):
        if self.record is not None: self.record.append(('raw', s))
        else: self.out.append(s)
    def label(self, name): self.raw(name + ':')
    def c(self, s): self.raw('    ; ' + s)
    def __call__(self, text):
        for line in text.strip().split('\n'):
            line = line.strip()
            if not line or line.startswith(';'): continue
            if self.record is not None: self.record.append(('ins', line))
            else:
                pre = self._process(self.st, line, self.opt)
                for x in pre: self.out.append('    ' + x)
                self.out.append('    ' + line)
    def _apply_wait(self, st, ins):
        m = re.search(r'vmcnt\((\d+)\)', ins.text)
        if m:
            n = int(m.group(1))
            self._drop(st.vm, n)
        m = re.search(r'lgkmcnt\((\d+)\)', ins.text)
        if m:
            n = int(m.group(1))
            if n == 0: st.lg[:] = []
            elif not any(e[1] for e in st.lg): self._drop(st.lg, n)
    def _drop(self, q, n):
        keep = []
        for k, e in enumerate(q):
            younger = sum(1 for y in q[k + 1:] if not y[-1])
            if younger < n: keep.append(e)
        q[:] = keep
    def _process(self, st, line, opt, check=False):
        ins = Inst(line); ins.optional = bool(opt)
        pre = []
        if ins.kind == 'wait':
            self._apply_wait(st, ins); st.hist.append(ins); st.hist = st.hist[-40:]; return pre
        touched = ins.src | ins.dst
        nl = need_wait(st.lg, touched)
        if nl is not None and any(e[1] for e in st.lg): nl = 0
        nv = need_wait(st.vm, touched)
        if nl is not None or nv is not None:
            w = 's_waitcnt'
            if nv is not None: w += ' vmcnt(%d)' % min(nv, 63)
            if nl is not None: w += ' lgkmcnt(%d)' % min(nl, 15)
            wi = Inst(w); wi.optional = bool(opt)
            self._apply_wait(st, wi); st.hist.append(wi); pre.append(w)
        n = hazard_states(st.hist, ins)
        while n > 0:
            k = min(n, 16)
            ni = Inst('s_nop %d' % (k - 1)); ni.optional = bool(opt); st.hist.append(ni); pre.append(ni.text); n -= k
        if ins.kind == 'ds': st.lg.append((vonly(ins.dst), False, bool(opt)))
        elif ins.kind == 'smem': st.lg.append((ins.dst, True, bool(opt)))
        elif ins.kind == 'vmem': st.vm.append((vonly(ins.dst), bool(opt)))
        st.hist.append(ins); st.hist = st.hist[-40:]
        return pre
    def opt_begin(self):
        if self.record is not None: self.record.append(('optb', None))
        else: self.opt += 1
    def opt_end(self):
        if self.record is not None: self.record.append(('opte', None))
        else: self.opt -= 1
    def drain(self):
        self('s_waitcnt vmcnt(0) lgkmcnt(0)')
    def reset_hist(self, nops=True):
        if nops: self('s_nop 15')
        self.st.hist = self.st.hist[-1:]
    def loop(self, body_fn):
        assert self.record is None
        self.record = []
        body_fn()
        rec = self.record; self.record = None
        def run(st, items):
            res = []; opt = self.opt
            for kind, x in items:
                if kind == 'ins': res.append(self._process(st, x, opt))
                else:
                    res.append([])
                    if kind == 'optb': opt += 1
                    if kind == 'opte': opt -= 1
            return res
        items = rec
        for it in range(6):
            st = self.st.clone()
            a = run(st, items); b = run(st, items); c = run(st, items)
            if not any(a) and not any(b) and not any(c): break
            new = []
            for (kind, x), pa, pb, pc in zip(items, a, b, c):
                vm = lg = None; nops = 0
                for pl in (pa, pb, pc):
                    tot = 0
                    for t in pl:
                        if t.startswith('s_waitcnt'):
                            m = re.search(r'vmcnt\((\d+)\)', t)
                            if m: vm = int(m.group(1)) if vm is None else min(vm, int(m.group(1)))
                            m = re.search(r'lgkmcnt\((\d+)\)', t)
                            if m: lg = int(m.group(1)) if lg is None else min(lg, int(m.group(1)))
                        else: tot += int(t.split()[1]) + 1
                    nops = max(nops, tot)
                if vm is not None or lg is not None:
                    w = 's_waitcnt' + (' vmcnt(%d)' % vm if vm is not None else '') + (' lgkmcnt(%d)' % lg if lg is not None else '')
                    new.append(('ins', w))
                while nops > 0:
                    k = min(nops, 16); new.append(('ins', 's_nop %d' % (k - 1))); nops -= k
                new.append((kind, x))
            items = new
        else:
            raise RuntimeError('loop did not converge')
        self.st = st
        for kind, x in items:
            if kind == 'ins': self.out.append('    ' + x)
            elif kind == 'raw': self.out.append(x)
    def text(self): return '\n'.join(self.out) + '\n'

def interleave(main, fills):
    out = []; n = len(main); m = len(fills); k = 0
    for i, x in enumerate(main):
        out.append(x)
        tgt = (m * (i + 1) + n - 1) // n
        while k < tgt: out.append(fills[k]); k += 1
    out += fills[k:]
    return out
```

```python
from asmlib import *

N = 25000; E = 800000
NB = 250; NPB = 100
NC = 250; EPC = 3200
RECB = 12
CH_BYTES = EPC * RECB
TAB_OFF = 0x00A00000
IMG_OFF = 0x00A80000
IMG_G, IMG_V, IMG_A, IMG_U, IMG_C = 0, 8192, 16384, 24576, 32768
S_OFF = 40
LOG2E_NEG = 0xbfb8aa3b

def srd(p, d, lo, hi, nbytes, add=0):
    if add:
        p(f's_add_u32 s{d}, s{lo}, {hex(add)}')
        p(f's_addc_u32 s{d+1}, s{hi}, 0')
    else:
        p(f's_mov_b32 s{d}, s{lo}')
        p(f's_mov_b32 s{d+1}, s{hi}')
    p(f's_mov_b32 s{d+2}, {hex(nbytes)}')
    p(f's_mov_b32 s{d+3}, 0x20000')

def wave_scan(p, v):
    for sh in (1, 2, 4, 8):
        p(f'v_add_u32_dpp v{v}, v{v}, v{v} row_shr:{sh} row_mask:0xf bank_mask:0xf bound_ctrl:0')
    p(f'v_add_u32_dpp v{v}, v{v}, v{v} row_bcast:15 row_mask:0xa bank_mask:0xf')
    p(f'v_add_u32_dpp v{v}, v{v}, v{v} row_bcast:31 row_mask:0xc bank_mask:0xf')

K1_THREADS = 832
K1_LDS = 2048 + CH_BYTES
K1_GRID = NC + 5

def gen_k1(p):
    STG, HIST, BASE = 0, CH_BYTES, CH_BYTES + 1024
    p.label('bin_kernel')
    p(f's_cmp_ge_u32 s2, {K1_GRID}')
    p('s_cbranch_scc1 K1_END')
    p('s_load_dwordx4 s[4:7], s[0:1], 8')
    p('s_load_dwordx2 s[8:9], s[0:1], 24')
    p('s_load_dwordx2 s[10:11], s[0:1], 72')
    p(f's_cmp_ge_u32 s2, {NC}')
    p('s_cbranch_scc1 K1_PREP')
    p('v_lshlrev_b32 v1, 2, v0')
    p('v_mov_b32 v2, 0')
    p('v_cmp_gt_u32 vcc, 256, v0')
    p('s_and_saveexec_b64 s[32:33], vcc')
    p(f'ds_write_b32 v1, v2 offset:{HIST}')
    p('s_mov_b64 exec, s[32:33]')
    p('v_lshlrev_b32 v3, 4, v0')
    p('v_lshlrev_b32 v4, 5, v0')
    p(f's_mul_i32 s34, s2, {EPC*4}')
    p(f's_mul_i32 s35, s2, {EPC*8}')
    p(f's_mul_i32 s36, s2, {CH_BYTES}')
    p(f's_movk_i32 s37, {EPC//4}')
    p('v_cmp_gt_u32 s[38:39], s37, v0')
    p('s_waitcnt lgkmcnt(0)')
    srd(p, 20, 8, 9, E * 4)
    srd(p, 16, 6, 7, E * 4)
    srd(p, 12, 4, 5, E * 8)
    p('s_mov_b64 exec, s[38:39]')
    p('buffer_load_dwordx4 v[8:11], v3, s[20:23], s34 offen')
    p('buffer_load_dwordx4 v[12:15], v3, s[16:19], s34 offen')
    p('buffer_load_dwordx4 v[16:19], v4, s[12:15], s35 offen')
    p('buffer_load_dwordx4 v[20:23], v4, s[12:15], s35 offen offset:16')
    srd(p, 24, 10, 11, NC * CH_BYTES)
    srd(p, 28, 10, 11, NB * 1024, add=TAB_OFF)
    p('s_barrier')
    p('v_mov_b32 v5, 1')
    p(f's_movk_i32 s40, {-NPB}')
    for i in range(4):
        p(f'v_mul_u32_u24 v{24+i}, 0x147b, v{8+i}')
        p(f'v_lshrrev_b32 v{24+i}, 19, v{24+i}')
        p(f'v_mad_i32_i24 v{8+i}, v{24+i}, s40, v{8+i}')
        p(f'v_lshlrev_b32 v{24+i}, 2, v{24+i}')
        p(f'ds_add_rtn_u32 v{28+i}, v{24+i}, v5 offset:{HIST}')
    for i in range(4):
        p(f'v_lshlrev_b32 v{12+i}, 7, v{12+i}')
        p(f'v_lshl_or_b32 v{12+i}, v{8+i}, 25, v{12+i}')
    p('s_mov_b64 exec, -1')
    p('v_and_b32 v6, 63, v0')
    p('v_lshlrev_b32 v6, 4, v6')
    p('s_waitcnt lgkmcnt(0)')
    p('s_barrier')
    p(f'ds_read_b128 v[32:35], v6 offset:{HIST}')
    p('v_add_u32 v36, v32, v33')
    p('v_add3_u32 v36, v36, v34, v35')
    p('v_mov_b32 v37, v36')
    wave_scan(p, 37)
    p('v_sub_u32 v40, v37, v36')
    p('v_add_u32 v41, v40, v32')
    p('v_add_u32 v42, v41, v33')
    p('v_add_u32 v43, v42, v34')
    p(f'ds_write_b128 v6, v[40:43] offset:{BASE}')
    p('v_cmp_gt_u32 vcc, 64, v0')
    p('s_and_saveexec_b64 s[32:33], vcc')
    p('s_cbranch_execz K1_NOTAB')
    p.opt_begin()
    p('v_lshlrev_b32 v44, 8, v6')
    p('s_lshl_b32 s41, s2, 2')
    for i in range(4):
        p(f'v_lshl_or_b32 v{32+i}, v{32+i}, 16, v{40+i}')
        p(f'buffer_store_dword v{32+i}, v44, s[28:31], s41 offen offset:{1024*i}')
    p.opt_end()
    p.label('K1_NOTAB')
    p('s_mov_b64 exec, s[38:39]')
    p('s_waitcnt lgkmcnt(0)')
    for i in range(4):
        p(f'ds_read_b32 v{44+i}, v{24+i} offset:{BASE}')
    for i in range(4):
        p(f'v_add_u32 v{44+i}, v{44+i}, v{28+i}')
        p(f'v_mul_u32_u24 v{44+i}, {RECB}, v{44+i}')
        p(f'ds_write2_b32 v{44+i}, v{16+2*i}, v{17+2*i} offset0:0 offset1:1')
        p(f'ds_write_b32 v{44+i}, v{12+i} offset:8')
    p('s_waitcnt lgkmcnt(0)')
    p('s_barrier')
    for k in range(3):
        p(f'ds_read_b128 v[{8+4*k}:{11+4*k}], v3 offset:{STG + k*12800}')
    for k in range(3):
        p(f's_add_u32 s41, s36, {k*12800}')
        p(f'buffer_store_dwordx4 v[{8+4*k}:{11+4*k}], v3, s[24:27], s41 offen')
    p('s_endpgm')
    p.label('K1_PREP')
    p.st = State()
    p('s_load_dwordx4 s[12:15], s[0:1], 32')
    p('s_load_dwordx2 s[16:17], s[0:1], 48')
    p(f's_sub_u32 s3, s2, {NC}')
    p('v_cmp_gt_u32 vcc, 512, v0')
    p('s_and_saveexec_b64 s[32:33], vcc')
    p('s_cbranch_execz K1_END')
    p('v_and_b32 v1, 31, v0')
    p('v_bfe_u32 v2, v0, 5, 1')
    p('v_bfe_u32 v3, v0, 6, 1')
    p('v_lshrrev_b32 v4, 7, v0')
    p('v_lshlrev_b32 v5, 4, v0')
    p('s_waitcnt lgkmcnt(0)')
    srd(p, 28, 10, 11, 36864, add=IMG_OFF)
    p('s_lshl_b32 s41, s3, 13')
    p('s_cmp_eq_u32 s3, 4')
    p('s_cbranch_scc1 K1_PREPC')
    p('s_mov_b32 s20, s16')
    p('s_mov_b32 s21, s17')
    p('s_cmp_eq_u32 s3, 1')
    p('s_cselect_b32 s20, s14, s20')
    p('s_cselect_b32 s21, s15, s21')
    p('s_cmp_eq_u32 s3, 3')
    p('s_cselect_b32 s20, s12, s20')
    p('s_cselect_b32 s21, s13, s21')
    p('s_cmp_eq_u32 s3, 0')
    p('s_cselect_b32 s42, 8192, 0')
    p(f's_cselect_b32 s43, {hex(LOG2E_NEG)}, 1.0')
    p('s_add_u32 s22, s42, 8192')
    p('s_mov_b32 s23, 0x20000')
    p('v_lshlrev_b32 v6, 11, v4')
    p('v_lshl_add_u32 v6, v2, 10, v6')
    p('v_lshl_add_u32 v6, v3, 6, v6')
    p('v_lshl_add_u32 v6, v1, 1, v6')
    for t in range(8):
        p(f'buffer_load_ushort v{8+t}, v6, s[20:23], s42 offen offset:{128*t}')
    for t in range(8):
        p(f'v_lshlrev_b32 v{8+t}, 16, v{8+t}')
        p(f'v_mul_f32 v{8+t}, s43, v{8+t}')
    for d in range(4):
        p(f'v_cvt_pk_bf16_f32 v{16+d}, v{8+2*d}, v{9+2*d}')
    p('buffer_store_dwordx4 v[16:19], v5, s[28:31], s41 offen')
    p('s_endpgm')
    p.label('K1_PREPC')
    p.st = State()
    p('v_cmp_gt_u32 vcc, 128, v0')
    p('s_and_saveexec_b64 s[32:33], vcc')
    p('s_cbranch_execz K1_END')
    srd(p, 20, 16, 17, 132 * 128)
    p('v_lshlrev_b32 v6, 6, v3')
    p('v_lshl_add_u32 v6, v1, 1, v6')
    p('s_movk_i32 s42, 0x4000')
    for t in range(4):
        p(f'buffer_load_ushort v{8+t}, v6, s[20:23], s42 offen offset:{128*t}')
    p(f's_mov_b32 s43, {hex(LOG2E_NEG)}')
    for t in range(4):
        p(f'v_lshlrev_b32 v{8+t}, 16, v{8+t}')
        p(f'v_mul_f32 v{8+t}, s43, v{8+t}')
    p('v_cvt_pk_bf16_f32 v16, v8, v9')
    p('v_cvt_pk_bf16_f32 v17, v10, v11')
    p('v_lshlrev_b32 v12, 16, v16')
    p('v_and_b32 v13, 0xffff0000, v16')
    p('v_lshlrev_b32 v14, 16, v17')
    p('v_and_b32 v15, 0xffff0000, v17')
    for t in range(4):
        p(f'v_sub_f32 v{12+t}, v{8+t}, v{12+t}')
    p('v_cvt_pk_bf16_f32 v20, v12, v13')
    p('v_cvt_pk_bf16_f32 v21, v14, v15')
    import struct
    sbits = struct.unpack('<I', struct.pack('<f', -float(S_OFF)))[0] >> 16
    p(f'v_mov_b32 v18, {hex(sbits)}')
    p('v_mov_b32 v19, 0')
    p('v_cmp_eq_u32 vcc, 1, v2')
    p('v_cndmask_b32 v16, v16, v20, vcc')
    p('v_cndmask_b32 v17, v17, v21, vcc')
    p('v_cndmask_b32 v18, v18, v19, vcc')
    p('buffer_store_dwordx4 v[16:19], v5, s[28:31], s41 offen')
    p.label('K1_END')
    p('s_endpgm')
```

```python
from asmlib import *
from k1 import *
import struct

def f32bits(x): return struct.unpack('<I', struct.pack('<f', x))[0]

RC = 3616
PT = 0
ACC = NPB * 256
IDX = 2 * NPB * 256
EV = IDX + RC * 4
GN = EV + RC * 8
DMA = GN + RC
assert DMA % 16 == 0
K2_LDS = DMA + 8 * 2 * 4096
assert K2_LDS <= 163840, K2_LDS
HIST = DMA
FLAG = HIST + 512
START = HIST + 1024
K2_THREADS = 512
K2_GRID = NB
OOB = 0x80000000

WG, WV, WC, OH, A, EA, PB = 0, 32, 64, 72, 76, 92, 96
G = [104, 136]; H = [120, 152]
T = 168
AD = [184, 188]
GNR, IX, CI, AR = 192, 196, 200, 204
PI, PE, PG, C4, TID, LANE = 208, 209, 210, 211, 212, 213
TMP = 214
TAB, BASEI, DI = 224, 228, 232
REC = 104
NVGPR = 240
SX, SREC, STAB, SIMG, SOUT = 12, 16, 20, 24, 28
SW, SJ0, SWD, SCNT, SM0, SOOB, SR3, SNT, STMP = 32, 33, 34, 35, 36, 37, 40, 41, 42
SK = 38
SMASK = 44
SSAVE = 76
SMORE = 78

def vr(b, n): return f'v[{b}:{b+n-1}]'
def sr(b, n): return f's[{b}:{b+n-1}]'
def mfma(d, a, b, c0=False):
    return f'v_mfma_f32_32x32x16_bf16 {vr(d,16)}, {vr(a,4)}, {vr(b,4)}, ' + ('0' if c0 else vr(d, 16))

def prefill(p):
    t = TMP
    p(f'v_lshlrev_b32 v{t}, 4, v{TID}')
    for i in range(4): p(f'v_mov_b32 v{T+i}, 0')
    for i in range(4): p(f'v_mov_b32 v{T+4+i}, {hex(OOB)}')
    nidx = RC * 4 // 16
    nz = RC * 9 // 16
    nz_tot = nz + 64
    def fill(base, nq, reg):
        k = 0
        while k < nq:
            rem = nq - k
            if rem < 512:
                p(f's_movk_i32 s{STMP}, {rem}')
                p(f'v_cmp_gt_u32 vcc, s{STMP}, v{TID}')
                p(f's_and_saveexec_b64 {sr(SSAVE,2)}, vcc')
            off = base + k * 16
            if off > 65535 - 16:
                p(f'v_add_u32 v{t+1}, {off}, v{t}')
                p(f'ds_write_b128 v{t+1}, {vr(reg,4)}')
            else:
                p(f'ds_write_b128 v{t}, {vr(reg,4)} offset:{off}')
            if rem < 512:
                p(f's_mov_b64 exec, {sr(SSAVE,2)}')
            k += 512
    fill(IDX, nidx, T + 4)
    fill(EV, nz_tot, T)

def load_records(p, tag):
    t = TMP
    p(f'v_and_b32 v{t}, 7, v{LANE}')
    p(f'v_lshrrev_b32 v{t+1}, 3, v{TID}')
    p(f's_mov_b32 s{STMP}, {4*CH_BYTES}')
    p(f'v_mul_lo_u32 v{t+1}, v{t+1}, s{STMP}')
    p(f'v_add_u32 v{t+2}, s{SJ0}, v{t}')
    p(f'v_mad_u32_u24 v{t+1}, v{t+2}, {RECB}, v{t+1}')
    for i in range(4):
        p(f'v_and_b32 v{t+3}, 0xffff, v{TAB+i}')
        p(f'v_mad_u32_u24 v{BASEI+i}, v{t+3}, {RECB}, v{t+1}')
        if i: p(f'v_add_u32 v{BASEI+i}, {i*CH_BYTES}, v{BASEI+i}')
        p(f'v_lshrrev_b32 v{DI+i}, 16, v{TAB+i}')
        p(f'v_subrev_u32 v{DI+i}, s{SJ0}, v{DI+i}')
    p(f'v_max_i32 v{t+3}, v{DI}, v{DI+1}')
    p(f'v_max3_i32 v{t+3}, v{t+3}, v{DI+2}, v{DI+3}')
    p(f'v_cmp_lt_i32 {sr(SMORE,2)}, s{SWD}, v{t+3}')
    for i in range(4):
        p(f'v_min_i32 v{DI+i}, s{SWD}, v{DI+i}')
        p(f'v_sub_u32 v{DI+i}, v{DI+i}, v{t}')
    for r in range(4):
        for i in range(4):
            k = r * 4 + i
            p(f'v_cmp_lt_i32 {sr(SMASK+2*k,2)}, {8*r}, v{DI+i}')
    p(f's_or_b64 {sr(SSAVE,2)}, {sr(SMASK+24,2)}, {sr(SMASK+26,2)}')
    p(f's_or_b64 {sr(SSAVE,2)}, {sr(SSAVE,2)}, {sr(SMASK+28,2)}')
    p(f's_or_b64 {sr(SSAVE,2)}, {sr(SSAVE,2)}, {sr(SMASK+30,2)}')
    p(f's_cselect_b32 s{SR3}, 1, 0')
    for r in range(4):
        if r == 3:
            p(f's_cmp_eq_u32 s{SR3}, 0')
            p(f's_cbranch_scc1 K2_LR3_{tag}')
            p.opt_begin()
        for i in range(4):
            k = r * 4 + i
            p(f's_mov_b64 exec, {sr(SMASK+2*k,2)}')
            p(f'buffer_load_dwordx3 {vr(REC+4*k,3)}, v{BASEI+i}, {sr(SREC,4)}, 0 offen offset:{96*r}')
        if r == 3:
            p.opt_end()
            p.label(f'K2_LR3_{tag}')
    p('s_mov_b64 exec, -1')

def T2(j, adset):
    l = []
    for g in range(4):
        l.append(f'v_rcp_f32 v{T+4*g}, v{T+4*g}')
        l.append(f'v_rcp_f32 v{T+4*g+1}, v{T+4*g+1}')
    for g in range(4):
        l.append(f'v_mul_f32 v{T+4*g+2}, v{T+4*g+2}, v{T+4*g}')
    for g in range(4):
        l.append(f'v_fma_f32 v{T+4*g+2}, v{T+4*g+3}, v{T+4*g+1}, v{T+4*g+2}')
    for g in range(4):
        l.append(f'ds_add_f32 v{AD[adset]+g}, v{T+4*g+2} offset:{ACC+128*j}')
    return l

def T1(j): return [f'v_exp_f32_e64 v{G[j]+i}, v{G[j]+i} clamp' for i in range(16)]

def PK(j):
    l = []; g_, h_ = G[j], H[j]
    for g in range(4):
        l.append(f'v_pk_add_f32 {vr(g_+4*g+2,2)}, {vr(g_+4*g+2,2)}, {sr(SK,2)}')
    for g in range(4):
        l.append(f'v_pk_add_f32 {vr(g_+4*g,2)}, {vr(g_+4*g,2)}, {sr(SK,2)}')
    for g in range(4):
        l.append(f'v_pk_mul_f32 {vr(T+4*g+2,2)}, {vr(h_+4*g,2)}, {vr(g_+4*g+2,2)}')
    for g in range(4):
        l.append(f'v_pk_mul_f32 {vr(T+4*g,2)}, {vr(g_+4*g,2)}, {vr(g_+4*g+2,2)}')
    for g in range(4):
        l.append(f'v_pk_fma_f32 {vr(T+4*g+2,2)}, {vr(h_+4*g+2,2)}, {vr(g_+4*g,2)}, {vr(T+4*g+2,2)}')
    return l

def cost(s):
    op = s.split()[0]
    if op.startswith('v_exp') or op.startswith('v_rcp'): return 8
    if op.startswith('v_'): return 4
    return 0

def weave(mf, fills):
    total = sum(cost(x) for x in fills); n = len(mf)
    out = []; k = 0; acc = 0
    for i, m in enumerate(mf):
        out += m
        tgt = total * (i + 1) / n
        while k < len(fills) and (acc + cost(fills[k]) / 2 <= tgt or i == n - 1):
            out.append(fills[k]); acc += cost(fills[k]); k += 1
    return out

def wgr(s, j): return WG + (s * 2 + j) * 4
def wvr(s, j): return WV + (s * 2 + j) * 4

def a_read(s, slot): return f'ds_read_b128 {vr(A+4*s,4)}, v{AR+s} offset:{slot*4096}'
def e_read(off): return f'ds_read_b64 {vr(EA,2)}, v{PE} offset:{off*2048}'
def gn_read(off): return f'ds_read_b128 {vr(GNR,4)}, v{PG} offset:{off*256}'
def ix_read(off): return f'ds_read_b128 {vr(IX,4)}, v{PI} offset:{off*1024}'
def pb_reads(j, adset): return [f'ds_read_b32 v{PB+4*j+i}, v{AD[adset]+i} offset:{PT+128*j}' for i in range(4)]
def ad_calc(adset): return [f'v_add_u32 v{AD[adset]+i}, v{GNR+i}, v{C4}' for i in range(4)]
def dma(slot):
    l = []
    for i in range(4):
        l.append(f'v_or3_b32 v{IX+i}, v{IX+i}, v{CI+i}, s{SOOB}')
    for i in range(4):
        l.append(f's_add_u32 m0, s{SM0}, {slot*4096 + i*1024}')
        l.append(f'buffer_load_dwordx4 v{IX+i}, {sr(SX,4)}, 0 offen lds')
    return l

def phase_a(p, par):
    nx = par ^ 1
    p('s_waitcnt vmcnt(4)')
    mf = [[mfma(G[1], EA, WC + 4, True), e_read(par + 1)],
          [mfma(G[1], OH, PB + 4)]]
    for s in range(4):
        mf.append([mfma(H[1], A + 4 * s, wvr(s, 1), s == 0)])
        mf.append([mfma(G[1], A + 4 * s, wgr(s, 1)), a_read(s, nx)])
    fills = [ix_read(par + 3)] + T2(1, nx) + ad_calc(nx) + pb_reads(0, nx) + T1(0)
    for x in weave(mf, fills): p(x)
    for x in PK(0): p(x)

def phase_b(p, par):
    nx = par ^ 1
    p('s_waitcnt lgkmcnt(0)')
    p(f's_cmp_gt_i32 s{SCNT}, 3')
    p(f's_cselect_b32 s{SOOB}, 0, {hex(OOB)}')
    mf = [[mfma(G[0], EA, WC, True)]]
    for s in range(4):
        if s == 3: mf.append([mfma(G[0], OH, PB)])
        mf.append([mfma(H[0], A + 4 * s, wvr(s, 0), s == 0)])
        mf.append([mfma(G[0], A + 4 * s, wgr(s, 0))])
    fills = pb_reads(1, nx) + [gn_read(par + 2)] + dma(nx) + T2(0, par) + T1(1)
    if par == 1:
        fills += [f'v_add_u32 v{PI}, 2048, v{PI}', f'v_add_u32 v{PE}, 4096, v{PE}', f'v_add_u32 v{PG}, 512, v{PG}']
    for x in weave(mf, fills): p(x)
    for x in PK(1): p(x)

def gen_k2(p):
    p.st = State()
    p.label('mpnn_kernel')
    p(f's_cmp_ge_u32 s2, {NB}')
    p('s_cbranch_scc1 K2_END')
    p('s_load_dwordx2 s[4:5], s[0:1], 0')
    p('s_load_dwordx2 s[6:7], s[0:1], 56')
    p('s_load_dwordx2 s[8:9], s[0:1], 72')
    p(f'v_mov_b32 v{TID}, v0')
    p(f'v_and_b32 v{LANE}, 63, v{TID}')
    p(f'v_lshrrev_b32 v{TMP}, 6, v{TID}')
    p(f'v_readfirstlane_b32 s{SW}, v{TMP}')
    t = TMP
    p(f'v_lshrrev_b32 v{t}, 3, v{TID}')
    p(f'v_lshlrev_b32 v{t}, 4, v{t}')
    p(f'v_and_b32 v{t+1}, 31, v{LANE}')
    p(f'v_lshrrev_b32 v{t+2}, 5, v{LANE}')
    p(f'v_lshlrev_b32 v{t+3}, 7, v{t+1}')
    p(f'v_lshl_add_u32 v{t+3}, v{t+2}, 4, v{t+3}')
    p(f'v_lshlrev_b32 v{t+4}, 4, v{LANE}')
    p(f's_and_b32 s{STMP}, s{SW}, 3')
    p(f's_lshl_b32 s{STMP}, s{STMP}, 12')
    p(f's_mul_i32 s43, s2, {NPB*128}')
    p(f's_add_u32 s43, s43, s{STMP}')
    p(f's_lshl_b32 s10, s2, 10')
    p(f's_add_u32 s10, s10, {hex(TAB_OFF)}')
    p('s_waitcnt lgkmcnt(0)')
    p(f's_add_u32 s{STAB}, s8, s10')
    p(f's_addc_u32 s{STAB+1}, s9, 0')
    p(f's_mov_b32 s{STAB+2}, {NC*4}')
    p(f's_mov_b32 s{STAB+3}, 0x20000')
    p(f'buffer_load_dwordx4 {vr(TAB,4)}, v{t}, {sr(STAB,4)}, 0 offen')
    srd(p, SX, 4, 5, N * 128)
    srd(p, SIMG, 8, 9, 36864, add=IMG_OFF)
    for s in range(4):
        p(f'buffer_load_dwordx4 {vr(A+4*s,4)}, v{t+3}, {sr(SX,4)}, s43 offen offset:{32*s}')
    p(f's_cmp_lt_u32 s{SW}, 4')
    p(f's_cselect_b32 s10, 0, {IMG_U-IMG_A}')
    p(f's_add_u32 s10, s10, {IMG_A}')
    p(f's_add_u32 s11, s10, 4096')
    for q in range(8):
        p(f'buffer_load_dwordx4 {vr(WG+4*q,4)}, v{t+4}, {sr(SIMG,4)}, s{10 + q//4} offen offset:{1024*(q%4)}')
    p(f's_mov_b32 s10, {IMG_C}')
    for j in range(2):
        p(f'buffer_load_dwordx4 {vr(WC+4*j,4)}, v{t+4}, {sr(SIMG,4)}, s10 offen offset:{1024*j}')
    srd(p, SREC, 8, 9, NC * CH_BYTES)
    srd(p, SOUT, 6, 7, N * 128)
    p(f'v_lshlrev_b32 v{C4}, 2, v{t+1}')
    p(f's_mov_b32 s{SK}, {hex(f32bits(2.0**-S_OFF))}')
    p(f's_mov_b32 s{SK+1}, s{SK}')
    p(f's_mov_b32 s{SJ0}, 0')
    p(f's_mov_b32 s{SWD}, 32')
    p(f's_lshl_b32 s{SM0}, s{SW}, 13')
    p(f's_add_u32 s{SM0}, s{SM0}, {DMA}')
    p(f'v_mov_b32 v{EA+2}, 0x3f80')
    p(f'v_mov_b32 v{EA+3}, 0')
    p(f'v_bfe_u32 v{t+5}, v{t+1}, 2, 1')
    p(f'v_lshrrev_b32 v{t+6}, 3, v{t+1}')
    p(f'v_lshl_add_u32 v{t+5}, v{t+5}, 2, v{t+6}')
    p(f'v_and_b32 v{t+6}, 3, v{t+1}')
    p(f'v_lshlrev_b32 v{t+7}, 2, v{t+2}')
    p(f'v_sub_u32 v{t+7}, v{t+5}, v{t+7}')
    p(f'v_mov_b32 v{t+8}, 0x3f803f80')
    for i in range(4):
        p(f'v_cmp_eq_u32 vcc, {i}, v{t+7}')
        p(f'v_cndmask_b32 v{OH+i}, 0, v{t+8}, vcc')
    p(f'v_lshl_add_u32 v{t+7}, v{t+6}, 3, v{t+5}')
    p(f'v_lshlrev_b32 v{t+7}, 7, v{t+7}')
    p(f'v_add_u32 v{t+7}, s{SM0}, v{t+7}')
    p(f'v_lshrrev_b32 v{t+8}, 4, v{t+1}')
    p(f'v_lshl_or_b32 v{t+8}, v{t+8}, 2, v{t+6}')
    p(f'v_xor_b32 v{t+8}, v{t+8}, v{t+2}')
    for s in range(4):
        p(f'v_xor_b32 v{t+9}, {2*s}, v{t+8}')
        p(f'v_lshl_add_u32 v{AR+s}, v{t+9}, 4, v{t+7}')
    p(f'v_lshl_add_u32 v{t+9}, v{t+5}, 2, v{t+6}')
    p(f'v_lshlrev_b32 v236, 3, v{t+9}')
    p(f'v_lshlrev_b32 v237, 4, v{t+2}')
    p(f'v_and_b32 v{t+5}, 7, v{LANE}')
    p(f'v_bfe_u32 v{t+6}, v{LANE}, 4, 1')
    p(f'v_lshlrev_b32 v{t+6}, 2, v{t+6}')
    p(f'v_xor_b32 v{t+5}, v{t+5}, v{t+6}')
    for i in range(4):
        p(f'v_xor_b32 v{t+6}, {i}, v{t+5}')
        p(f'v_lshlrev_b32 v{CI+i}, 4, v{t+6}')
    p(f'v_lshrrev_b32 v238, 3, v{LANE}')
    p(f'v_lshlrev_b32 v238, 4, v238')
    p(f's_and_b32 s{STMP}, s{SW}, 3')
    p(f's_lshl_b32 s{STMP}, s{STMP}, 13')
    p(f's_cmp_lt_u32 s{SW}, 4')
    p(f's_cselect_b32 s43, {PT}, {ACC}')
    p(f's_add_u32 s{STMP}, s{STMP}, s43')
    p(f'v_lshl_add_u32 v239, v{t+2}, 10, v{C4}')
    p(f'v_add_u32 v239, s{STMP}, v239')
    prefill(p)
    load_records(p, 'a')
    for j in range(2):
        for s in range(4):
            p(mfma(WV + 16 * j, A + 4 * s, wgr(s, j), s == 0))
    p(f's_cmp_lt_u32 s{SW}, 4')
    p('s_cbranch_scc0 K2_UW')
    p.opt_begin()
    p(f's_mov_b32 s{STMP}, {hex(LOG2E_NEG)}')
    for i in range(32):
        r = WV + i
        p(f'v_mul_f32 v{r}, s{STMP}, v{r}')
        p(f'v_and_b32 v{TMP}, 0xffff0000, v{r}')
        p(f'v_sub_f32 v{r}, v{r}, v{TMP}')
        p(f'v_cvt_pk_bf16_f32 v{r}, v{TMP}, v{r}')
    p('s_branch K2_NW')
    p.label('K2_UW')
    p('s_nop 15')
    p(f's_mov_b32 s{STMP}, {hex(f32bits(2.0**S_OFF))}')
    for i in range(32):
        p(f'v_mul_f32 v{WV+i}, s{STMP}, v{WV+i}')
    p.opt_end()
    p.label('K2_NW')
    p(f'v_add_u32 v{TMP}, 128, v239')
    p(f's_and_b32 s{STMP}, s{SW}, 3')
    p(f's_cmp_eq_u32 s{STMP}, 3')
    p('s_cselect_b32 exec_hi, 0, -1')
    for g in range(4):
        if g == 1:
            p('s_cbranch_scc1 K2_NWD')
            p.opt_begin()
        for j in range(2):
            for r in (0, 2):
                a = 'v239' if j == 0 else f'v{TMP}'
                p(f'ds_write2st64_b32 {a}, v{WV+16*j+4*g+r}, v{WV+16*j+4*g+r+1} offset0:{8*g+r} offset1:{8*g+r+1}')
    p.opt_end()
    p.label('K2_NWD')
    p('s_mov_b64 exec, -1')
    p(f'v_lshlrev_b32 v{TMP}, 4, v{LANE}')
    for q in range(16):
        if q % 4 == 0: p(f's_mov_b32 s10, {q*1024}')
        p(f'buffer_load_dwordx4 {vr(WG+4*q,4)}, v{TMP}, {sr(SIMG,4)}, s10 offen offset:{1024*(q%4)}')
    p('s_waitcnt vmcnt(16) lgkmcnt(0)')
    p.label('K2_SORT')
    p('s_barrier')
    p(f'v_mov_b32 v{TMP}, 1')
    p(f'v_mov_b32 v{TMP+1}, {FLAG}')
    p(f's_mov_b64 exec, {sr(SMORE,2)}')
    p(f'ds_write_b32 v{TMP+1}, v{TMP}')
    for r in range(4):
        if r == 3:
            p(f's_cmp_eq_u32 s{SR3}, 0')
            p('s_cbranch_scc1 K2_AT3')
            p.opt_begin()
        for i in range(4):
            k = r * 4 + i
            p(f's_mov_b64 exec, {sr(SMASK+2*k,2)}')
            p(f'v_lshrrev_b32 v{T+k}, 23, v{REC+4*k+2}')
            p(f'v_add_u32 v{T+k}, {HIST}, v{T+k}')
            p(f'ds_add_rtn_u32 v{REC+4*k+3}, v{T+k}, v{TMP}')
        if r == 3:
            p.opt_end()
            p.label('K2_AT3')
    p('s_mov_b64 exec, -1')
    p(f'v_lshlrev_b32 v{TMP+2}, 3, v{LANE}')
    p(f'v_add_u32 v{TMP+2}, {HIST}, v{TMP+2}')
    p('s_waitcnt lgkmcnt(0)')
    p('s_barrier')
    p(f'ds_read_b64 {vr(TMP+4,2)}, v{TMP+2}')
    p(f'ds_read_b32 v{TMP+3}, v{TMP+1}')
    p(f'v_add_u32 v{TMP+4}, 3, v{TMP+4}')
    p(f'v_and_b32 v{TMP+4}, -4, v{TMP+4}')
    p(f'v_add_u32 v{TMP+5}, 3, v{TMP+5}')
    p(f'v_and_b32 v{TMP+5}, -4, v{TMP+5}')
    p(f'v_add_u32 v{TMP+6}, v{TMP+4}, v{TMP+5}')
    wave_scan(p, TMP + 6)
    p(f'v_sub_u32 v{TMP+9}, v{TMP+6}, v{TMP+5}')
    p(f'v_sub_u32 v{TMP+8}, v{TMP+9}, v{TMP+4}')
    p(f'ds_write_b64 v{TMP+2}, {vr(TMP+8,2)} offset:{START-HIST}')
    p(f'v_readlane_b32 s{SNT}, v{TMP+6}, 63')
    p(f'v_readfirstlane_b32 s{SMORE}, v{TMP+3}')
    p(f's_cmp_gt_u32 s{SNT}, {RC}')
    p('s_cbranch_scc1 K2_SLOW')
    p(f's_add_u32 s{SNT}, s{SNT}, 31')
    p(f's_lshr_b32 s{SNT}, s{SNT}, 5')
    p('s_waitcnt lgkmcnt(0)')
    p(f's_mov_b32 s{STMP}, 0x3fffff')
    for r in range(4):
        if r == 3:
            p(f's_cmp_eq_u32 s{SR3}, 0')
            p('s_cbranch_scc1 K2_SC3')
            p.opt_begin()
        for i in range(4):
            k = r * 4 + i
            p(f's_mov_b64 exec, {sr(SMASK+2*k,2)}')
            p(f'ds_read_b32 v{AD[0]+i}, v{T+k} offset:{START-HIST}')
        for i in range(4):
            k = r * 4 + i
            p(f's_mov_b64 exec, {sr(SMASK+2*k,2)}')
            pos = AD[0] + i
            p(f'v_add_u32 v{pos}, v{pos}, v{REC+4*k+3}')
            p(f'v_lshlrev_b32 v{TMP}, 2, v{pos}')
            p(f'v_and_b32 v{TMP+1}, s{STMP}, v{REC+4*k+2}')
            p(f'ds_write_b32 v{TMP}, v{TMP+1} offset:{IDX}')
            p(f'v_lshlrev_b32 v{TMP+2}, 3, v{pos}')
            p(f'v_add_u32 v{TMP+2}, {EV}, v{TMP+2}')
            p(f'ds_write_b64 v{TMP+2}, {vr(REC+4*k,2)}')
            p(f'v_and_b32 v{TMP+3}, -4, v{pos}')
            p(f'v_add_u32 v{TMP+3}, {GN}, v{TMP+3}')
            p(f'v_lshrrev_b32 v{TMP+4}, 25, v{REC+4*k+2}')
            p(f'v_lshlrev_b32 v{TMP+4}, 8, v{TMP+4}')
            p(f'ds_write_b32 v{TMP+3}, v{TMP+4}')
        if r == 3:
            p.opt_end()
            p.label('K2_SC3')
    p('s_mov_b64 exec, -1')
    p(f's_lshl_b32 s{STMP}, s{SW}, 7')
    p(f's_add_u32 s{STMP}, s{STMP}, {IDX}')
    p(f'v_add_u32 v{PI}, s{STMP}, v238')
    p(f's_lshl_b32 s{STMP}, s{SW}, 8')
    p(f's_add_u32 s{STMP}, s{STMP}, {EV}')
    p(f'v_add_u32 v{PE}, s{STMP}, v236')
    p(f's_lshl_b32 s{STMP}, s{SW}, 5')
    p(f's_add_u32 s{STMP}, s{STMP}, {GN}')
    p(f'v_add_u32 v{PG}, s{STMP}, v237')
    p(f's_sub_u32 s{SCNT}, s{SNT}, s{SW}')
    p(f's_add_u32 s{SCNT}, s{SCNT}, 7')
    p(f's_ashr_i32 s{SCNT}, s{SCNT}, 3')
    p('s_waitcnt vmcnt(0) lgkmcnt(0)')
    p('s_barrier')
    p(f's_cmp_lt_i32 s{SCNT}, 1')
    p('s_cbranch_scc1 K2_BEND')
    p(ix_read(0))
    p(f's_mov_b32 s{SOOB}, 0')
    for x in dma(0): p(x)
    p(ix_read(1))
    p(f's_cmp_gt_i32 s{SCNT}, 1')
    p(f's_cselect_b32 s{SOOB}, 0, {hex(OOB)}')
    for x in dma(1): p(x)
    p(gn_read(0)); p(e_read(0)); p(ix_read(2))
    for x in ad_calc(0): p(x)
    for x in pb_reads(0, 0): p(x)
    for x in pb_reads(1, 0): p(x)
    p(gn_read(1))
    for g in range(4):
        p(f'v_mov_b32 v{T+4*g}, 1.0'); p(f'v_mov_b32 v{T+4*g+1}, 1.0')
        p(f'v_mov_b32 v{T+4*g+2}, 0'); p(f'v_mov_b32 v{T+4*g+3}, 0')
        p(f'v_mov_b32 v{AD[1]+g}, v{C4}')
    p('s_waitcnt vmcnt(4)')
    for s in range(4): p(a_read(s, 0))
    p('s_waitcnt lgkmcnt(0)')
    p(f's_cmp_gt_i32 s{SCNT}, 2')
    p(f's_cselect_b32 s{SOOB}, 0, {hex(OOB)}')
    for x in dma(0): p(x)
    p(mfma(G[0], EA, WC, True))
    p(mfma(G[0], OH, PB))
    for s in range(4):
        p(mfma(H[0], A + 4 * s, wvr(s, 0), s == 0))
        p(mfma(G[0], A + 4 * s, wgr(s, 0)))
    p('s_nop 15')
    def body():
        p.label('K2_LOOP')
        phase_a(p, 0); phase_b(p, 0)
        p(f's_sub_u32 s{SCNT}, s{SCNT}, 1')
        p(f's_cmp_eq_u32 s{SCNT}, 0')
        p('s_cbranch_scc1 K2_EXIT0')
        phase_a(p, 1); phase_b(p, 1)
        p(f's_sub_u32 s{SCNT}, s{SCNT}, 1')
        p(f's_cmp_lg_u32 s{SCNT}, 0')
        p('s_cbranch_scc1 K2_LOOP')
    p.loop(body)
    for x in T2(1, 1): p(x)
    p('s_branch K2_BEND')
    p.label('K2_EXIT0')
    for x in T2(1, 0): p(x)
    p.label('K2_BEND')
    p('s_waitcnt vmcnt(0) lgkmcnt(0)')
    p('s_nop 15')
    p('s_barrier')
    p(f's_cmp_lg_u32 s{SMORE}, 0')
    p('s_cbranch_scc1 K2_NEXT')
    p(f'v_lshlrev_b32 v{TMP}, 5, v{TID}')
    p(f'v_lshlrev_b32 v{TMP+1}, 4, v{TID}')
    p(f's_mul_i32 s10, s2, {NPB*128}')
    p(f's_mov_b32 s{STMP}, {hex(f32bits(2.0**-S_OFF))}')
    p(f's_mov_b32 s43, {hex(f32bits(-1.4426950408889634 * 2.0**-S_OFF))}')
    nitems = NPB * 8
    for rnd in range(2):
        b = 104 + 32 * rnd
        if rnd == 1:
            p(f's_movk_i32 s11, {nitems - 512}')
            p(f'v_cmp_gt_u32 vcc, s11, v{TID}')
            p(f's_and_saveexec_b64 {sr(SSAVE,2)}, vcc')
            p('s_cbranch_execz K2_END')
            p(f's_add_u32 s10, s10, 8192')
        p(f'ds_read_b128 {vr(b,4)}, v{TMP} offset:{ACC + rnd*16384}')
        p(f'ds_read_b128 {vr(b+4,4)}, v{TMP} offset:{ACC + rnd*16384 + 16}')
        for i in range(8):
            p(f'v_mul_f32 v{b+8+i}, s43, v{b+i}')
            p(f'v_mul_f32 v{b+i}, s{STMP}, v{b+i}')
        for i in range(8): p(f'v_exp_f32 v{b+8+i}, v{b+8+i}')
        for i in range(8): p(f'v_add_f32 v{b+8+i}, 1.0, v{b+8+i}')
        for i in range(8): p(f'v_rcp_f32 v{b+8+i}, v{b+8+i}')
        for i in range(8): p(f'v_mul_f32 v{b+i}, v{b+i}, v{b+8+i}')
        for i in range(4): p(f'v_cvt_pk_bf16_f32 v{b+16+i}, v{b+2*i}, v{b+2*i+1}')
        p(f'buffer_store_dwordx4 {vr(b+16,4)}, v{TMP+1}, {sr(SOUT,4)}, s10 offen')
    p.label('K2_END')
    p('s_endpgm')
    p.label('K2_SLOW')
    p.st = State()
    p('s_waitcnt vmcnt(0) lgkmcnt(0)')
    p('s_barrier')
    p(f's_mov_b32 s{SWD}, 8')
    p('s_branch K2_RELOAD')
    p.label('K2_NEXT')
    p(f's_add_u32 s{SJ0}, s{SJ0}, s{SWD}')
    p.label('K2_RELOAD')
    prefill(p)
    load_records(p, 'b')
    p('s_waitcnt vmcnt(0) lgkmcnt(0)')
    p('s_branch K2_SORT')
```

```python
import sys
from asmlib import *
import k1, k2
def build():
    p = Prog()
    hdr = open('standalone__edge_featured_mpnn_egc__graph.s.ref').read().split('\n')
    top = [l for l in hdr if l.startswith(';') and '@launch' not in l and 'Override' not in l and 'grid=ceil' not in l]
    out = '\n'.join(top) + '\n'
    out += f'; @launch kernel=bin_kernel grid=({k1.K1_GRID},1,1) block=({k1.K1_THREADS},1,1) lds={k1.K1_LDS}\n'
    out += f'; @launch kernel=mpnn_kernel grid=({k2.K2_GRID},1,1) block=({k2.K2_THREADS},1,1) lds={k2.K2_LDS}\n'
    out += '.amdgcn_target "amdgcn-amd-amdhsa--gfx950"\n.text\n'
    p.raw('.globl bin_kernel\n.p2align 8\n.type bin_kernel,@function')
    k1.gen_k1(p)
    p.raw('.globl mpnn_kernel\n.p2align 8\n.type mpnn_kernel,@function')
    k2.gen_k2(p)
    out += p.text()
    def kd(name, nv, ns):
        return f'''.p2align 6
.amdhsa_kernel {name}
  .amdhsa_next_free_vgpr {nv}
  .amdhsa_next_free_sgpr {ns}
  .amdhsa_accum_offset {(nv+3)//4*4}
  .amdhsa_group_segment_fixed_size 0
  .amdhsa_kernarg_size 80
  .amdhsa_user_sgpr_count 2
  .amdhsa_user_sgpr_kernarg_segment_ptr 1
  .amdhsa_system_sgpr_workgroup_id_x 1
  .amdhsa_float_denorm_mode_32 3
  .amdhsa_dx10_clamp 0
.end_amdhsa_kernel
'''
    out += '.section .rodata,"a"\n' + kd('bin_kernel', 48, 48) + kd('mpnn_kernel', k2.NVGPR, 80)
    return out
if __name__ == '__main__':
    dst = sys.argv[1] if len(sys.argv) > 1 else 'standalone__edge_featured_mpnn_egc__graph.s'
    open(dst, 'w').write(build())
    print('wrote', dst)
```
